```python
import torch

def _softmax(x, axis=-1):
    return torch.softmax(x, dim=axis)
def _gelu(x):
    return torch.nn.functional.gelu(x, approximate="tanh")
def _silu(x):
    return torch.nn.functional.silu(x)
def _sigmoid(x):
    return torch.sigmoid(x)
def _layernorm(x, axis=-1, eps=1e-5):
    m = x.mean(dim=axis, keepdim=True)
    v = x.var(dim=axis, keepdim=True, unbiased=False)
    return (x - m) / torch.sqrt(v + eps)
def _scatter_add(tgt, idx, src, axis=0):
    return tgt.clone().index_add_(axis, idx, src)
def _segment_sum(src, seg, n):
    out = torch.zeros((n,) + src.shape[1:], dtype=src.dtype)
    return out.index_add_(0, seg, src)
def _pad(x, pw):
    flat = tuple(v for pair in reversed(pw) for v in pair)
    return torch.nn.functional.pad(x, flat)

kernel_name = 'recurrent_scan__linear_attn_block__glu_gated_geglu__prompt'

def setup_inputs():

    _w = (lambda a: (lambda t: t.to(torch.bfloat16) if t.is_floating_point() else t)(torch.as_tensor(a)))
    def _A_setup():
        B, S, D = 1, 2048, 640
        return {
            "x": _w((lambda *s: torch.randn(*s, dtype=torch.bfloat16) * 0.05)(B, S, D)),
            "wqkv": _w((lambda *s: torch.randn(*s, dtype=torch.bfloat16) * 0.8)(D, 3 * D)),
            "wo": _w((lambda *s: torch.randn(*s, dtype=torch.bfloat16) * 0.8)(D, D)),
        }
    _A_in = _A_setup()

    def _B_setup():
        B, S, Dm, Df = 1, 2048, 640, 1536
        return {
            "x": _w((lambda *s: torch.randn(*s, dtype=torch.bfloat16) * 0.05)(B, S, Dm)),
            "w_gate": _w((lambda *s: torch.randn(*s, dtype=torch.bfloat16) * 0.2)(Dm, Df) * (Dm ** -0.5)),
            "w_up": _w((lambda *s: torch.randn(*s, dtype=torch.bfloat16) * 0.2)(Dm, Df) * (Dm ** -0.5)),
            "w_down": _w((lambda *s: torch.randn(*s, dtype=torch.bfloat16) * 0.2)(Df, Dm) * (Df ** -0.5)),
        }
    _B_in = _B_setup()

    return {
        "A_x": _A_in["x"],
        "A_wqkv": _A_in["wqkv"],
        "A_wo": _A_in["wo"],
        "B_x": _B_in["x"],
        "B_w_gate": _B_in["w_gate"],
        "B_w_up": _B_in["w_up"],
        "B_w_down": _B_in["w_down"],
    }

def reference(A_x, A_wqkv, A_wo, B_x, B_w_gate, B_w_up, B_w_down):
    def _A_ref(x, wqkv, wo):
        B, S, D = x.shape
        H = 32; Dh = D // H
        qkv = (lambda x, *d: x.permute(*d))((x @ wqkv).reshape(B, S, 3, H, Dh), 2, 0, 3, 1, 4)
        q, k, v = qkv[0], qkv[1], qkv[2]
        phi = lambda t: torch.where(t > 0, t + 1, torch.exp(t)) + 1e-6
        pq, pk = phi(q), phi(k)
        kv = torch.einsum("bhsd,bhse->bhde", pk, v)
        z = torch.einsum("bhsd->bhd", pk)
        num = torch.einsum("bhqd,bhde->bhqe", pq, kv)
        den = torch.einsum("bhqd,bhd->bhq", pq, z)[..., None] + 1e-6
        o = num / den
        return (lambda x, *d: x.permute(*d))(o, 0, 2, 1, 3).reshape(B, S, D) @ wo

    def _B_ref(x, w_gate, w_up, w_down):
        g = torch.einsum("bsd,df->bsf", x, w_gate)
        u = torch.einsum("bsd,df->bsf", x, w_up)
        h = _gelu(g) * u
        return torch.einsum("bsf,fd->bsd", h, w_down)

    x = A_x
    xn = _layernorm(x, axis=-1)
    s = _A_ref(xn, A_wqkv, A_wo)
    g = _silu(_B_ref(xn, B_w_gate, B_w_up, B_w_down))
    return x + s * g
```

```python
import re

TRANS = ("v_exp_f32", "v_rcp_f32", "v_rsq_f32", "v_sqrt_f32", "v_log_f32", "v_sin_f32", "v_cos_f32")
REG = re.compile(r"^(-)?(?:abs\()?\|?([vas])(?:(\d+)|\[(\d+):(\d+)\])\|?\)?$")

def regs_of(op):
    op = op.strip()
    if op in ("vcc", "vcc_lo", "vcc_hi"): return [("s", 106), ("s", 107)]
    if op == "exec": return [("s", 126), ("s", 127)]
    if op == "m0": return [("s", 124)]
    m = REG.match(op)
    if not m: return []
    k = m.group(2)
    if m.group(3) is not None: return [(k, int(m.group(3)))]
    return [(k, i) for i in range(int(m.group(4)), int(m.group(5)) + 1)]

def split_ops(s):
    out, depth, cur = [], 0, ""
    for ch in s:
        if ch in "[(": depth += 1
        if ch in "])": depth -= 1
        if ch == "," and depth == 0:
            out.append(cur.strip()); cur = ""
        else: cur += ch
    if cur.strip(): out.append(cur.strip())
    return out

class Ins:
    __slots__ = ("text", "op", "kind", "w", "r", "passes", "c", "ab", "slots", "wide", "isdot", "trans", "perm", "rdlane", "sel")

def parse(text):
    t = text.split(";")[0].strip()
    parts = t.split(None, 1)
    op = parts[0]
    rest = parts[1] if len(parts) > 1 else ""
    ops = split_ops(rest)
    mods = []
    if ops:
        lastp = ops[-1].split()
        ops[-1] = lastp[0] if lastp else ""
        mods = lastp[1:]
    I = Ins(); I.text = text; I.op = op; I.w = []; I.r = []; I.passes = 0; I.c = []; I.ab = []; I.slots = 1
    I.wide = []; I.isdot = False; I.trans = False; I.perm = False; I.rdlane = False; I.sel = False
    R = [regs_of(o) for o in ops]
    if op.startswith("v_mfma"):
        I.kind = "mfma"; I.w = R[0]; I.ab = R[1] + R[2]; I.c = R[3]; I.r = I.ab + I.c
        I.passes = 8 if "32x32" in op else 4
    elif op.startswith("v_"):
        I.kind = "valu"
        base = op.replace("_e32", "").replace("_e64", "").replace("_dpp", "").replace("_sdwa", "")
        I.trans = base in TRANS
        I.isdot = base.startswith("v_dot")
        I.perm = base.startswith("v_permlane") or "_dpp" in op or any(m.startswith("row_") or m.startswith("quad_perm") for m in mods)
        I.rdlane = base in ("v_readfirstlane_b32", "v_readlane_b32")
        I.sel = "_sdwa" in op
        if base.startswith("v_permlane") and "swap" in base:
            I.w = R[0] + R[1]; I.r = R[0] + R[1]
        elif base in ("v_add_co_u32", "v_sub_co_u32", "v_addc_co_u32", "v_subb_co_u32", "v_subrev_co_u32"):
            I.w = R[0] + R[1]; I.r = sum(R[2:], [])
        elif base == "v_nop":
            pass
        else:
            I.w = R[0]; I.r = sum(R[1:], [])
            if base.startswith("v_fmac") or base.startswith("v_dot2c") or base.startswith("v_pk_fmac"): I.r = I.r + R[0]
            if base == "v_cndmask_b32" and len(ops) == 3: I.r = I.r + regs_of("vcc")
    elif op.startswith("ds_"):
        I.kind = "ds"
        if op.startswith("ds_read") or op.startswith("ds_bpermute") or op.startswith("ds_permute") or op.startswith("ds_swizzle"):
            I.w = R[0]; I.r = sum(R[1:], [])
        else:
            I.r = sum(R, [])
        if "addtid" in op: I.r = I.r + [("s", 124)]
    elif op.startswith("buffer_") or op.startswith("global_"):
        I.kind = "vmem"
        if op in ("buffer_wbl2", "buffer_inv"): pass
        elif "lds" in mods or "_lds_" in op:
            I.r = sum(R, []) + [("s", 124)]
        elif "_load" in op:
            I.w = R[0]; I.r = sum(R[1:], [])
        elif "atomic" in op:
            I.r = sum(R, [])
            if "sc0" in mods: I.w = R[0]
        else:
            I.r = sum(R, [])
            if "x3" in op or "x4" in op:
                I.wide = R[0] if op.startswith("buffer_") else R[1]
    elif op.startswith("s_"):
        I.kind = "salu"
        if op == "s_nop": I.slots = int(ops[0], 0) + 1
        elif op.startswith("s_cmp") or op.startswith("s_cbranch") or op in ("s_branch", "s_barrier", "s_waitcnt", "s_endpgm", "s_setprio", "s_sleep"):
            I.r = sum(R, [])
        elif "saveexec" in op:
            I.w = R[0] + regs_of("exec"); I.r = R[1] + regs_of("exec")
        else:
            I.w = R[0] if R else []; I.r = sum(R[1:], [])
    else:
        raise ValueError("unknown op " + text)
    return I

class Asm:
    def __init__(self):
        self.lines = []
        self.hist = []
        self.nnops = 0
    def raw(self, s):
        self.lines.append(s)
    def label(self, name):
        self.lines.append(name + ":")
    def comment(self, s):
        self.lines.append("    ; " + s)
    def need(self, I):
        req = 0
        dist = 0
        rs, ws = set(I.r), set(I.w)
        for P in reversed(self.hist):
            if dist > 20: break
            n = 0
            pw = set(P.w)
            if P.kind == "valu":
                vw = {x for x in pw if x[0] in "va"}
                sw = {x for x in pw if x[0] == "s"}
                if I.kind == "mfma" and vw & rs: n = max(n, 2)
                if I.kind == "valu":
                    if I.rdlane and vw & rs: n = max(n, 1)
                    if I.perm and vw & rs: n = max(n, 2)
                    if P.trans and not I.trans and vw & rs: n = max(n, 1)
                    if P.sel and vw & (rs | ws): n = max(n, 1)
                    if sw & rs: n = max(n, 4 if I.rdlane else 2)
                    if P.isdot and vw & (rs | ws):
                        same = (P.op == I.op)
                        if not same: n = max(n, 3)
                        else:
                            ab = set(I.r) - set(I.w)
                            if vw & ab: n = max(n, 3)
                if I.kind in ("vmem", "ds", "mfma") and P.isdot and vw & rs: n = max(n, 3)
                if I.kind == "vmem" and sw & rs: n = max(n, 5)
                if I.kind == "salu" and sw & rs: n = max(n, 2)
                if I.kind == "mfma" and (("s", 126) in sw): n = max(n, 4)
            elif P.kind == "mfma":
                big = P.passes == 8
                if I.kind == "mfma":
                    if pw & set(I.ab): n = max(n, 12 if big else 8)
                    if pw & set(I.c):
                        if not (I.c == P.w and I.passes == P.passes): n = max(n, 10 if big else 6)
                    elif pw & ws and not (I.c == P.w):
                        n = max(n, 12 if big else 8)
                elif I.kind in ("valu", "vmem", "ds"):
                    if pw & (rs | ws): n = max(n, 12 if big else 8)
                    if I.kind == "valu" and set(P.c) & ws: n = max(n, 7 if big else 3)
            elif P.kind == "salu":
                if ("s", 124) in pw and ("s", 124) in rs and I.kind in ("vmem", "ds"): n = max(n, 1)
            elif P.kind == "vmem":
                if P.wide and set(P.wide) & ws: n = max(n, 2 if I.kind == "valu" else 1)
            if n - dist > req: req = n - dist
            dist += P.slots
        return req
    def __call__(self, text):
        for t in text.split("\n"):
            t = t.strip()
            if not t: continue
            I = parse(t)
            k = self.need(I)
            while k > 0:
                m = min(k, 16)
                N = parse(f"s_nop {m-1}")
                self.lines.append(f"    s_nop {m-1}")
                self.hist.append(N); self.nnops += 1
                k -= m
            self.lines.append("    " + t)
            self.hist.append(I)
            if len(self.hist) > 40: self.hist = self.hist[-30:]
    def flush_hazards(self):
        self("s_nop 15")
    def text(self):
        return "\n".join(self.lines) + "\n"
```

```python
H_OFF  = 0
PQ_OFF = 128 * 48 * 1024
WD_OFF = PQ_OFF + 128 * 20480
WO_OFF = WD_OFF + 8 * 48 * 5 * 1024
KV_OFF = WO_OFF + 8 * 4 * 5 * 5 * 1024
KV_BYTES = 32 * 1680
WS_BYTES = KV_OFF + KV_BYTES
STAMP_OFF = 16 << 20
import struct
def f32(x): return "0x%08x" % struct.unpack("<I", struct.pack("<f", x))[0]
LOG2E = 1.4426950408889634
WO_GROUPS = [('m',0),('m',1),('m',2),('m',3),('s',0),('m',4),('m',5),('m',6),('m',7),('s',1)]

KD = '''.amdhsa_kernel {name}
  .amdhsa_next_free_vgpr {nv}
  .amdhsa_next_free_sgpr {ns}
  .amdhsa_accum_offset {acc}
  .amdhsa_group_segment_fixed_size 0
  .amdhsa_kernarg_size 80
  .amdhsa_user_sgpr_count 2
  .amdhsa_user_sgpr_kernarg_segment_ptr 1
  .amdhsa_system_sgpr_workgroup_id_x 1
.end_amdhsa_kernel'''

class VM:
    def __init__(self): self.ops = []
    def issue(self, tag): self.ops.append(tag)
    def count_after(self, tags):
        last = -1
        for i, t in enumerate(self.ops):
            if t in tags: last = i
        if last < 0: return None
        return len(self.ops) - 1 - last
```

```python
from asm import Asm
from common import *

P12 = 0; P12SZ = 16384; NP12 = 5
AB = 81920; ASZ = 16384
P3B = 131072; P3SZ = 8192
STAT = 155648
CS = STAT + 1024
LDS_BYTES = 163840
KVC = 0
KVC_DUMMY = 2 * 13440

vLANE, vC, vQ = 1, 2, 3
vA0, vA1, vP1, vP2, vP3 = 4, 5, 6, 7, 8
vB12 = [[9, 10], [11, 12]]
vB3 = 13
vAR = [[14 + 2 * t + p for p in range(2)] for t in range(4)]
vONE = 22; vS1 = 23; vS2 = 24
vCSA = 25
T0 = 30
SETS = [40, 76]
ACC = 112
E0 = 192
def acc(b, t): return ACC + (b * 4 + t) * 4
def afr(st, t): return SETS[st] + 4 * t
def bfr(st, b): return SETS[st] + 16 + 4 * b
def r4(x): return f"v[{x}:{x+3}]"
def r2(x): return f"v[{x}:{x+1}]"

SX, SP1, SP2, SP3, SWS, SDBG = 24, 28, 32, 36, 40, 44
sRB, sCJ, sW, sMW, sNW, sFJ = 48, 49, 50, 51, 52, 53
sW1K, sW2K = 54, 55
sT = 56
def srd(x): return f"s[{x}:{x+3}]"

def gen(a, stamps=False):
    a.raw(".globl p1_kernel\n.p2align 8\n.type p1_kernel,@function\np1_kernel:")
    a("s_cmp_ge_u32 s2, 256")
    a("s_cbranch_scc1 P1_END")
    a("s_load_dwordx16 s[4:19], s[0:1], 0")
    a("s_load_dwordx4 s[20:23], s[0:1], 64")
    if stamps: a("s_memrealtime s[72:73]")
    a(f"s_and_b32 s{sT}, s2, 7")
    a(f"s_lshr_b32 s{sT+1}, s2, 3")
    a(f"s_and_b32 s{sRB}, s{sT}, 1")
    a(f"s_lshl_b32 s{sRB}, s{sRB}, 3")
    a(f"s_and_b32 s{sT+2}, s{sT+1}, 7")
    a(f"s_add_u32 s{sRB}, s{sRB}, s{sT+2}")
    a(f"s_lshr_b32 s{sCJ}, s{sT}, 1")
    a(f"s_lshl_b32 s{sCJ}, s{sCJ}, 2")
    a(f"s_lshr_b32 s{sT+2}, s{sT+1}, 3")
    a(f"s_add_u32 s{sCJ}, s{sCJ}, s{sT+2}")
    a(f"s_sub_u32 s{sFJ}, s{sCJ}, 4")
    a(f"v_lshrrev_b32 v{T0}, 6, v0")
    a(f"v_and_b32 v{vLANE}, 63, v0")
    a(f"v_readfirstlane_b32 s{sW}, v{T0}")
    a(f"v_and_b32 v{vC}, 15, v0")
    a(f"v_bfe_u32 v{vQ}, v0, 4, 2")
    a(f"s_lshr_b32 s{sMW}, s{sW}, 2")
    a(f"s_and_b32 s{sNW}, s{sW}, 3")
    a(f"s_lshl_b32 s{sW1K}, s{sW}, 10")
    a(f"s_lshl_b32 s{sW2K}, s{sW}, 11")
    a(f"s_mul_i32 s{sT}, s{sCJ}, 320")
    a(f"s_lshl_b32 s{sT+1}, s{sFJ}, 8")
    a(f"s_lshl_b32 s{sT+2}, s{sFJ}, 7")
    a(f"s_add_u32 s62, s{sT}, 1280")
    a(f"s_add_u32 s63, s{sT}, 2576")
    a(f"s_add_u32 s64, s{sT}, 1344")
    a("s_movk_i32 s60, 3072")
    a(f"s_cmp_lt_u32 s{sCJ}, 4")
    a("s_cselect_b32 s60, 3840, s60")
    a("s_cselect_b32 s61, 80, 64")
    a(f"s_cselect_b32 s62, s62, s{sT+1}")
    a(f"s_cselect_b32 s63, s63, s{sT+1}")
    a(f"s_cselect_b32 s64, s64, s{sT+2}")
    a("s_cselect_b32 s65, 80, 32")
    a("s_cselect_b32 s66, 1216, 16")
    a(f"s_lshr_b32 s{sT}, s{sW}, 1")
    a(f"s_and_b32 s{sT}, s{sT}, 1")
    a(f"s_lshl_b32 s{sT}, s{sT}, 2")
    a(f"v_or_b32 v{T0}, s{sT}, v{vQ}")
    a(f"v_lshrrev_b32 v{T0+1}, 1, v{vC}")
    a(f"v_xor_b32 v{T0}, v{T0}, v{T0+1}")
    a(f"v_lshrrev_b32 v{T0+1}, 1, v{T0}")
    a(f"v_mul_u32_u24 v{T0+1}, s61, v{T0+1}")
    a(f"v_and_b32 v{T0}, 1, v{T0}")
    a(f"v_lshl_add_u32 v{T0+1}, v{T0}, 5, v{T0+1}")
    a(f"v_and_b32 v{T0}, 1, v{vC}")
    a(f"v_lshl_add_u32 v{T0+1}, v{T0}, 4, v{T0+1}")
    a(f"s_lshl_b32 s{sT}, s{sW}, 2")
    a(f"v_add_u32 v{T0}, s{sT}, v{vQ}")
    a(f"v_mul_u32_u24 v{T0}, s60, v{T0}")
    a(f"v_add_u32 v{T0}, v{T0}, v{T0+1}")
    a(f"v_add_u32 v{vP1}, s62, v{T0}")
    a(f"v_add_u32 v{vP2}, s63, v{T0}")
    a(f"s_and_b32 s{sT}, s{sW}, 1")
    a(f"s_lshl_b32 s{sT}, s{sT}, 1")
    a(f"v_and_b32 v{T0}, 1, v{vQ}")
    a(f"v_or_b32 v{T0}, s{sT}, v{T0}")
    a(f"v_bfe_u32 v{T0+1}, v{vLANE}, 1, 2")
    a(f"v_xor_b32 v{T0}, v{T0}, v{T0+1}")
    a(f"v_mul_u32_u24 v{T0}, s65, v{T0}")
    a(f"v_and_b32 v{T0+1}, 1, v{vLANE}")
    a(f"v_mul_u32_u24 v{T0+1}, s66, v{T0+1}")
    a(f"v_add_u32 v{T0}, v{T0}, v{T0+1}")
    a(f"v_lshrrev_b32 v{T0+2}, 3, v{vLANE}")
    a(f"s_lshl_b32 s{sT}, s{sW}, 3")
    a(f"v_add_u32 v{T0+1}, s{sT}, v{T0+2}")
    a(f"v_mul_u32_u24 v{T0+1}, 3840, v{T0+1}")
    a(f"v_add3_u32 v{vP3}, v{T0}, v{T0+1}, s64")
    a(f"s_lshl_b32 s{sT}, s{sRB}, 7")
    a(f"s_lshl_b32 s{sT+1}, s{sW}, 4")
    a(f"s_add_u32 s{sT}, s{sT}, s{sT+1}")
    a(f"v_add_u32 v{T0}, s{sT}, v{T0+2}")
    a(f"v_mul_u32_u24 v{T0}, 1280, v{T0}")
    a(f"v_and_b32 v{T0+1}, 7, v{vLANE}")
    a(f"v_xor_b32 v{T0+1}, v{T0+1}, v{vQ}")
    a(f"v_lshl_add_u32 v{vA0}, v{T0+1}, 4, v{T0}")
    a(f"v_xor_b32 v{T0+1}, 4, v{T0+1}")
    a(f"v_lshl_add_u32 v{vA1}, v{T0+1}, 4, v{T0}")
    a(f"v_add_u32 v{vA1}, {8*1280}, v{vA1}")
    a("s_waitcnt lgkmcnt(0)")
    def mk(s, lo, n):
        a(f"s_mov_b32 s{s}, s{lo}\ns_mov_b32 s{s+1}, s{lo+1}\ns_mov_b32 s{s+2}, {n}\ns_mov_b32 s{s+3}, 0x20000")
    mk(SX, 4, 2048 * 1280)
    mk(SP3, 6, 640 * 3840)
    mk(SWS, 22, 32 << 20)
    mk(SDBG, 20, 256)
    a(f"s_lshl_b32 s67, s60, 5")
    a(f"s_mul_i32 s{SP1+2}, s60, 640\ns_mul_i32 s{SP2+2}, s60, 640")
    a(f"s_cmp_lt_u32 s{sCJ}, 4")
    a(f"s_cselect_b32 s{SP1}, s6, s12\ns_cselect_b32 s{SP1+1}, s7, s13\ns_mov_b32 s{SP1+3}, 0x20000")
    a(f"s_cselect_b32 s{SP2}, s6, s14\ns_cselect_b32 s{SP2+1}, s7, s15\ns_mov_b32 s{SP2+3}, 0x20000")
    a(f"s_cbranch_scc1 P1_KV")
    a(f"s_cmp_ge_u32 s{sFJ}, 10")
    a(f"s_cbranch_scc1 P1_GU")
    for kind in ("GUQ", "GU", "KV"):
        if kind != "GUQ": a.label("P1_" + kind)
        a.flush_hazards()
        body(a, kind, stamps)
        a("s_branch P1_END")
    a.label("P1_END")
    a("s_endpgm")

def setup_read_addrs(a):
    a(f"v_lshrrev_b32 v{T0}, 2, v{vC}")
    a(f"v_and_b32 v{T0+1}, 3, v{vC}")
    a(f"v_lshl_add_u32 v{T0+2}, v{vQ}, 3, v{T0}")
    a(f"v_and_b32 v{T0+3}, 1, v{vQ}")
    a(f"v_lshl_or_b32 v{T0+4}, v{T0+3}, 2, v{T0}")
    a(f"s_lshl_b32 s{sT}, s{sNW}, 1")
    a(f"v_xor_b32 v{T0+4}, s{sT}, v{T0+4}")
    a(f"v_lshlrev_b32 v{T0+5}, 8, v{T0+2}")
    a(f"v_lshl_add_u32 v{T0+5}, v{T0+1}, 3, v{T0+5}")
    a(f"v_lshl_add_u32 v{vB12[0][0]}, v{T0+4}, 5, v{T0+5}")
    a(f"v_xor_b32 v{T0+4}, 1, v{T0+4}")
    a(f"v_lshl_add_u32 v{vB12[1][0]}, v{T0+4}, 5, v{T0+5}")
    a(f"v_add_u32 v{vB12[0][1]}, 0x10000, v{vB12[0][0]}")
    a(f"v_add_u32 v{vB12[1][1]}, 0x10000, v{vB12[1][0]}")
    a(f"v_lshrrev_b32 v{T0+4}, 1, v{T0}")
    a(f"v_lshl_or_b32 v{T0+4}, v{T0+3}, 1, v{T0+4}")
    a(f"v_xor_b32 v{T0+4}, s{sNW}, v{T0+4}")
    a(f"v_lshlrev_b32 v{T0+5}, 7, v{T0+2}")
    a(f"v_lshl_add_u32 v{T0+5}, v{T0+1}, 3, v{T0+5}")
    a(f"v_lshl_add_u32 v{T0+5}, v{T0+4}, 5, v{T0+5}")
    a(f"v_add_u32 v{vB3}, {P3B}, v{T0+5}")
    a(f"v_lshrrev_b32 v{T0}, 1, v{vC}")
    a(f"v_xor_b32 v{T0}, v{T0}, v{vQ}")
    a(f"v_lshlrev_b32 v{T0}, 4, v{T0}")
    a(f"v_lshl_add_u32 v{T0}, v{vC}, 7, v{T0}")
    a(f"v_xor_b32 v{T0+1}, 64, v{T0}")
    for t in range(4):
        a(f"s_xor_b32 s{sT}, s{sNW}, {t}")
        a(f"s_lshl_b32 s{sT}, s{sT}, 11")
        a(f"s_lshl_b32 s{sT+1}, s{sMW}, 13")
        a(f"s_add_u32 s{sT}, s{sT}, s{sT+1}")
        a(f"s_add_u32 s{sT}, s{sT}, {AB}")
        a(f"v_add_u32 v{vAR[t][0]}, s{sT}, v{T0}")
        a(f"v_add_u32 v{vAR[t][1]}, s{sT}, v{T0+1}")

def body(a, kind, stamps):
    hasq = kind != "GU"
    NB = 5 if hasq else 4
    vm = VM()
    def dma_stage(s):
        base = P12 + (s % NP12) * P12SZ
        L = []
        L.append(f"s_mul_i32 s{sT+2}, s67, {s}\ns_add_u32 m0, s{sW1K}, {base}\nbuffer_load_dwordx4 v{vP1}, {srd(SP1)}, s{sT+2} offen lds")
        L.append(f"s_add_u32 m0, s{sW1K}, {base+8192}\nbuffer_load_dwordx4 v{vP2}, {srd(SP2)}, s{sT+2} offen lds")
        return [(x, ("S", s)) for x in L]
    def dma_a(c):
        base = AB + (c % 3) * ASZ
        return [(f"s_mov_b32 s{sT+3}, {c*128}\ns_add_u32 m0, s{sW2K}, {base}\nbuffer_load_dwordx4 v{vA0}, {srd(SX)}, s{sT+3} offen lds", ("A", c)),
                (f"s_add_u32 m0, s{sW2K}, {base+1024}\nbuffer_load_dwordx4 v{vA1}, {srd(SX)}, s{sT+3} offen lds", ("A", c))]
    def dma_p3(c):
        if not hasq: return []
        base = P3B + (c % 3) * P3SZ
        return [(f"s_mov_b32 s{sT+4}, {c*64*3840}\ns_add_u32 m0, s{sW1K}, {base}\nbuffer_load_dwordx4 v{vP3}, {srd(SP3)}, s{sT+4} offen lds", ("P", c))]
    def emit_dma(x):
        a(x[0]); vm.issue(x[1])
    def need_tags(s): return {("S", s), ("A", s // 2), ("P", s // 2)}
    def reads(s, st):
        L = []
        slot = s % NP12; c = s // 2; p = s % 2
        aoff = (c % 3) * ASZ
        hi = 1 if slot == 4 else 0
        so = slot * P12SZ - hi * 65536
        L.append(f"ds_read_b128 {r4(afr(st,0))}, v{vAR[0][p]} offset:{aoff}")
        for b in range(4):
            part, t = b >> 1, b & 1
            for u in range(2):
                L.append(f"ds_read_b64_tr_b16 {r2(bfr(st,b)+2*u)}, v{vB12[t][hi]} offset:{so + part*8192 + u*1024}")
            if b < 3: L.append(f"ds_read_b128 {r4(afr(st,b+1))}, v{vAR[b+1][p]} offset:{aoff}")
        if hasq:
            for u in range(2):
                L.append(f"ds_read_b64_tr_b16 {r2(bfr(st,4)+2*u)}, v{vB3} offset:{(c%3)*P3SZ + p*4096 + u*512}")
        return L
    if kind == "KV":
        kv_zero_init(a)
    for x in dma_a(0) + dma_p3(0) + dma_stage(0) + dma_stage(1) + dma_a(1) + dma_p3(1) + dma_stage(2) + dma_stage(3) + dma_a(2) + dma_p3(2) + dma_stage(4):
        emit_dma(x)
    setup_read_addrs(a)
    a(f"v_mov_b32 v{vONE}, 0x3f803f80")
    a(f"v_mov_b32 v{vS1}, 0\nv_mov_b32 v{vS2}, 0")
    for i in range(5): a(f"v_mov_b32 v{vCSA+i}, 0")
    for i in range(NB * 16): a(f"v_mov_b32 v{ACC+i}, 0")
    a(f"s_cmp_lg_u32 s{sMW}, 0")
    a("s_cselect_b64 vcc, -1, 0")
    a(f"s_waitcnt vmcnt({vm.count_after(need_tags(0))})")
    if kind == "KV": kv_zero_flag(a)
    a("s_barrier")
    if stamps: a("s_memrealtime s[74:75]")
    for x in reads(0, 0): a(x)
    for s in range(20):
        cur, nxt = s & 1, (s + 1) & 1
        fill = []
        if s < 19:
            a(f"s_waitcnt vmcnt({vm.count_after(need_tags(s+1))}) lgkmcnt(0)")
            a("s_barrier")
            fill += [(x, None) for x in reads(s + 1, nxt)]
            if s + 5 < 20: fill += dma_stage(s + 5)
            if s % 2 == 1 and (s - 1) // 2 + 3 < 10: fill += dma_a((s - 1) // 2 + 3)
            if s % 2 == 0 and s >= 2 and (s - 2) // 2 + 3 < 10: fill += dma_p3((s - 2) // 2 + 3)
        else:
            a("s_waitcnt lgkmcnt(0)")
        for i in range(4):
            fill.append((f"v_dot2_f32_bf16 v{vS1}, v{afr(cur,0)+i}, v{vONE}, v{vS1}", None))
            fill.append((f"v_dot2_f32_bf16 v{vS2}, v{afr(cur,0)+i}, v{afr(cur,0)+i}, v{vS2}", None))
        nm = NB * 4
        k = 0; fi = 0
        for b in range(NB):
            for t in range(4):
                if kind == "KV": a(f"v_mfma_f32_16x16x32_bf16 {r4(acc(b,t))}, {r4(afr(cur,t))}, {r4(bfr(cur,b))}, {r4(acc(b,t))}")
                else: a(f"v_mfma_f32_16x16x32_bf16 {r4(acc(b,t))}, {r4(bfr(cur,b))}, {r4(afr(cur,t))}, {r4(acc(b,t))}")
                k += 1
                tgt = (len(fill) * k + nm - 1) // nm
                while fi < min(tgt, len(fill)):
                    x = fill[fi]; fi += 1
                    a(x[0])
                    if x[1] is not None: vm.issue(x[1])
            lab = f"P1_{kind}_cs{s}_{b}"
            a(f"s_cbranch_vccnz {lab}" if s % 2 == 0 else f"s_cbranch_vccz {lab}")
            for i in range(4):
                a(f"v_dot2_f32_bf16 v{vCSA+b}, v{bfr(cur,b)+i}, v{vONE}, v{vCSA+b}")
            a.label(lab)
    if stamps: a("s_memrealtime s[76:77]")
    finalize_stats(a, NB)
    if kind == "KV": epi_kv(a)
    else:
        epi_gu(a, hasq)
        if not hasq: prearrange(a)
    if stamps:
        a("s_waitcnt vmcnt(0)")
        a("s_memrealtime s[78:79]")
        a("s_waitcnt lgkmcnt(0)")
        a(f"s_lshl_b32 s{sT}, s2, 3\ns_add_u32 s{sT}, s{sT}, s{sW}\ns_lshl_b32 s{sT}, s{sT}, 4\ns_add_u32 s{sT}, s{sT}, {STAMP_OFF}")
        a("v_mov_b32 v30, s72\nv_mov_b32 v31, s74\nv_mov_b32 v32, s76\nv_mov_b32 v33, s78\nv_mov_b32 v34, 0")
        a(f"buffer_store_dwordx4 v[30:33], v34, {srd(SWS)}, s{sT} offen")

def qreduce(a, v, tmp):
    a(f"v_mov_b32 v{tmp}, v{v}")
    a(f"v_permlane32_swap_b32 v{v}, v{tmp}")
    a(f"v_add_f32 v{v}, v{v}, v{tmp}")
    a(f"v_mov_b32 v{tmp}, v{v}")
    a(f"v_permlane16_swap_b32 v{v}, v{tmp}")
    a(f"v_add_f32 v{v}, v{v}, v{tmp}")

def bf16r(a, v):
    a(f"v_cvt_pk_bf16_f32 v{v}, v{v}, v{v}")
    a(f"v_lshlrev_b32 v{v}, 16, v{v}")

def finalize_stats(a, NB):
    a("s_nop 3")
    qreduce(a, vS1, T0); qreduce(a, vS2, T0 + 1)
    for b in range(NB): qreduce(a, vCSA + b, T0 + 2 + b)
    a(f"v_mul_f32 v{vS1}, {f32(1/640)}, v{vS1}")
    a(f"v_mul_f32 v{vS2}, {f32(1/640)}, v{vS2}")
    a(f"v_fma_f32 v{vS2}, -v{vS1}, v{vS1}, v{vS2}")
    a(f"v_max_f32 v{vS2}, 0, v{vS2}")
    bf16r(a, vS1); bf16r(a, vS2)
    a(f"v_add_f32 v{vS2}, {f32(1e-5)}, v{vS2}")
    bf16r(a, vS2)
    a(f"v_sqrt_f32 v{vS2}, v{vS2}")
    bf16r(a, vS2)
    a(f"v_rcp_f32 v{T0}, v{vS2}")
    a(f"v_mul_f32 v{T0+1}, v{vS1}, v{T0}")
    a(f"s_lshl_b32 s{sT}, s{sW}, 7")
    a(f"s_add_u32 s{sT}, s{sT}, {STAT}")
    a(f"v_lshl_add_u32 v{T0+2}, v{vC}, 3, s{sT}")
    a(f"ds_write_b64 v{T0+2}, {r2(T0)}")
    a(f"s_mul_i32 s{sT}, s{sW}, 320")
    a(f"s_add_u32 s{sT}, s{sT}, {CS}")
    a(f"v_lshl_add_u32 v{T0+2}, v{vC}, 2, s{sT}")
    for b in range(NB): a(f"ds_write_b32 v{T0+2}, v{vCSA+b} offset:{b*64}")
    a("s_waitcnt lgkmcnt(0)")
    a("s_barrier")

def epi_gu(a, hasq):
    NB = 5 if hasq else 4
    RS = E0
    CSR = 40
    for t in range(4):
        a(f"s_xor_b32 s{sT}, s{sNW}, {t}\ns_lshl_b32 s{sT+1}, s{sMW}, 2\ns_add_u32 s{sT}, s{sT}, s{sT+1}\ns_lshl_b32 s{sT}, s{sT}, 7\ns_add_u32 s{sT}, s{sT}, {STAT}")
        a(f"v_lshl_add_u32 v{T0}, v{vC}, 3, s{sT}")
        a(f"ds_read_b64 {r2(RS+2*t)}, v{T0}")
    a(f"s_mul_i32 s{sT}, s{sNW}, 320\ns_add_u32 s{sT}, s{sT}, {CS}")
    a(f"v_lshl_add_u32 v{T0}, v{vQ}, 4, s{sT}")
    for b in range(NB):
        a(f"ds_read_b128 {r4(CSR+4*b)}, v{T0} offset:{b*64}")
        a(f"ds_read_b128 {r4(CSR+20+4*b)}, v{T0} offset:{1280+b*64}")
    a(f"v_lshlrev_b32 v{T0+1}, 4, v{vLANE}")
    a(f"v_lshlrev_b32 v{T0+2}, 3, v{vLANE}")
    c0 = -2.0 * 0.7978845608028654 * LOG2E
    a(f"s_mov_b32 s68, {f32(c0 * 0.044715)}")
    a(f"v_mov_b32 v{T0+3}, {f32(c0)}")
    a(f"s_mov_b32 s69, {f32(LOG2E)}")
    a(f"s_mov_b32 s70, {f32(1e-6)}")
    a("s_waitcnt lgkmcnt(0)")
    for i in range(NB * 4): a(f"v_add_f32 v{CSR+i}, v{CSR+i}, v{CSR+20+i}")
    X = 80
    for t in range(4):
        rs, mr = RS + 2 * t, RS + 2 * t + 1
        a(f"s_xor_b32 s{sT}, s{sNW}, {t}\ns_lshl_b32 s{sT+1}, s{sMW}, 2\ns_add_u32 s{sT}, s{sT}, s{sT+1}\ns_lshl_b32 s{sT+1}, s{sRB}, 3\ns_add_u32 s{sT}, s{sT}, s{sT+1}")
        a(f"s_mul_i32 s{sT+1}, s{sT}, 48\ns_lshl_b32 s{sT+2}, s{sFJ}, 2\ns_add_u32 s{sT+1}, s{sT+1}, s{sT+2}\ns_add_u32 s{sT+1}, s{sT+1}, s{sNW}\ns_lshl_b32 s{sT+1}, s{sT+1}, 10")
        els = [(bb, i) for bb in range(2) for i in range(4)]
        G = [acc(bb, t) + i for bb, i in els]; U = [acc(2 + bb, t) + i for bb, i in els]
        CG = [CSR + 4 * bb + i for bb, i in els]; CU = [CSR + 8 + 4 * bb + i for bb, i in els]
        for j in range(8): a(f"v_mul_f32 v{X+j}, v{CG[j]}, v{mr}")
        for j in range(8): a(f"v_fma_f32 v{G[j]}, v{G[j]}, v{rs}, -v{X+j}")
        for j in range(8): a(f"v_mul_f32 v{X+j}, v{G[j]}, v{G[j]}")
        for j in range(8): a(f"v_fma_f32 v{X+j}, v{X+j}, s68, v{T0+3}")
        for j in range(8): a(f"v_mul_f32 v{X+j}, v{X+j}, v{G[j]}")
        for j in range(8): a(f"v_exp_f32 v{X+j}, v{X+j}")
        for j in range(8): a(f"v_mul_f32 v{X+8+j}, v{CU[j]}, v{mr}")
        for j in range(8): a(f"v_add_f32 v{X+j}, 1.0, v{X+j}")
        for j in range(8): a(f"v_rcp_f32 v{X+j}, v{X+j}")
        for j in range(8): a(f"v_fma_f32 v{U[j]}, v{U[j]}, v{rs}, -v{X+8+j}")
        for j in range(8): a(f"v_mul_f32 v{G[j]}, v{G[j]}, v{X+j}")
        for j in range(8): a(f"v_mul_f32 v{G[j]}, v{G[j]}, v{U[j]}")
        P = X + 16 + 4 * (t & 1)
        for j in range(4): a(f"v_cvt_pk_bf16_f32 v{P+j}, v{G[2*j]}, v{G[2*j+1]}")
        a(f"buffer_store_dwordx4 {r4(P)}, v{T0+1}, {srd(SWS)}, s{sT+1} offen")
        if hasq:
            a(f"s_mul_i32 s{sT+1}, s{sT}, 20480\ns_lshl_b32 s{sT+2}, s{sFJ}, 11\ns_add_u32 s{sT+1}, s{sT+1}, s{sT+2}\ns_lshl_b32 s{sT+2}, s{sNW}, 9\ns_add_u32 s{sT+1}, s{sT+1}, s{sT+2}\ns_add_u32 s{sT+1}, s{sT+1}, {PQ_OFF}")
            Q = [acc(4, t) + i for i in range(4)]
            for j in range(4): a(f"v_mul_f32 v{X+j}, v{CSR+16+j}, v{mr}")
            for j in range(4): a(f"v_fma_f32 v{Q[j]}, v{Q[j]}, v{rs}, -v{X+j}")
            phi(a, Q, X)
            P2 = X + 24 + 2 * (t & 1)
            for j in range(2): a(f"v_cvt_pk_bf16_f32 v{P2+j}, v{Q[2*j]}, v{Q[2*j+1]}")
            a(f"buffer_store_dwordx2 {r2(P2)}, v{T0+2}, {srd(SWS)}, s{sT+1} offen")

def phi(a, R, X):
    n = len(R)
    for j in range(n): a(f"v_mul_f32 v{X+j}, s69, v{R[j]}")
    for j in range(n): a(f"v_exp_f32 v{X+j}, v{X+j} clamp")
    for j in range(n): a(f"v_max_f32 v{R[j]}, s70, v{R[j]}")
    for j in range(n): a(f"v_add_f32 v{R[j]}, v{R[j]}, v{X+j}")

def kv_zero_init(a):
    a(f"s_or_b32 s{sT}, s{sW}, s{sRB}")
    a(f"s_cmp_lg_u32 s{sT}, 0")
    a("s_cbranch_scc1 P1_KVZ_DONE")
    a(f"s_mul_i32 s{sT+1}, s{sCJ}, 13440\ns_add_u32 s{sT+1}, s{sT+1}, {KV_OFF}")
    a(f"v_lshlrev_b32 v{T0+1}, 4, v{vLANE}")
    for i in range(4): a(f"v_mov_b32 v{T0+4+i}, 0")
    for i in range(14):
        if i == 13:
            a("s_mov_b64 exec, 0xff")
        a(f"buffer_store_dwordx4 {r4(T0+4)}, v{T0+1}, {srd(SWS)}, s{sT+1} offen sc0 sc1")
        a(f"s_add_u32 s{sT+1}, s{sT+1}, 1024")
    a("s_mov_b64 exec, -1")
    a.label("P1_KVZ_DONE")
    a("s_nop 1")

def kv_zero_flag(a):
    a(f"s_or_b32 s{sT}, s{sW}, s{sRB}")
    a(f"s_cmp_lg_u32 s{sT}, 0")
    a("s_cbranch_scc1 P1_KVF_DONE")
    a(f"s_lshl_b32 s{sT}, s{sCJ}, 2")
    a(f"v_mov_b32 v{T0}, 1\nv_mov_b32 v{T0+1}, 0")
    a("s_mov_b64 exec, 1")
    a(f"buffer_atomic_add v{T0}, v{T0+1}, {srd(SDBG)}, s{sT} offen offset:32")
    a("s_mov_b64 exec, -1")
    a.label("P1_KVF_DONE")

def epi_kv(a):
    RS = E0
    CSR = T0
    for t in range(4):
        a(f"s_xor_b32 s{sT}, s{sNW}, {t}\ns_lshl_b32 s{sT+1}, s{sMW}, 2\ns_add_u32 s{sT}, s{sT}, s{sT+1}\ns_lshl_b32 s{sT}, s{sT}, 7\ns_add_u32 s{sT}, s{sT}, {STAT}")
        a(f"v_lshl_add_u32 v{224}, v{vQ}, 5, s{sT}")
        a(f"ds_read_b128 {r4(RS+8*t)}, v224")
        a(f"ds_read_b128 {r4(RS+8*t+4)}, v224 offset:16")
    a(f"s_mul_i32 s{sT}, s{sNW}, 320\ns_add_u32 s{sT}, s{sT}, {CS}")
    a(f"v_lshl_add_u32 v224, v{vC}, 2, s{sT}")
    for b in range(5):
        a(f"ds_read_b32 v{CSR+b}, v224 offset:{b*64}")
        a(f"ds_read_b32 v{CSR+5+b}, v224 offset:{1280+b*64}")
    a(f"s_mov_b32 s69, {f32(LOG2E)}")
    a(f"s_mov_b32 s70, {f32(1e-6)}")
    a(f"v_cmp_gt_u32 s[68-4:68-3], 8, v{vC}".replace("68-4", "64").replace("68-3", "65"))
    a("s_waitcnt lgkmcnt(0)")
    for b in range(5): a(f"v_add_f32 v{CSR+b}, v{CSR+b}, v{CSR+5+b}")
    X = 225
    FR = 40
    for b in range(5):
        for t in range(4):
            R = [acc(b, t) + i for i in range(4)]
            for i in range(4): a(f"v_mul_f32 v{X+i}, v{CSR+b}, v{RS+8*t+2*i+1}")
            for i in range(4): a(f"v_fma_f32 v{R[i]}, v{R[i]}, v{RS+8*t+2*i}, -v{X+i}")
            if b in (0, 1): phi(a, R, X)
            if b == 4:
                for i in range(4): a(f"v_mov_b32 v{X+4+i}, v{R[i]}")
                phi(a, [X + 4 + i for i in range(4)], X)
                for i in range(4): a(f"v_cndmask_b32 v{R[i]}, v{R[i]}, v{X+4+i}, s[64:65]")
            d = FR + (b * 2 + (t >> 1)) * 4 + (t & 1) * 2
            a(f"v_cvt_pk_bf16_f32 v{d}, v{R[0]}, v{R[1]}")
            a(f"v_cvt_pk_bf16_f32 v{d+1}, v{R[2]}, v{R[3]}")
    for i in range(8): a(f"v_cndmask_b32 v{80+i}, v{FR+32+i}, v{vONE}, s[64:65]")
    def fr(b, p): return (80 + 4 * p) if b == 5 else FR + (b * 2 + p) * 4
    pairs = [(5, 0), (2, 0), (5, 1), (2, 1), (3, 1), (2, 4), (3, 4), (5, 4)]
    D = 112
    for i in range(32): a(f"v_mov_b32 v{D+i}, 0")
    for p in range(2):
        for k, (va, kb) in enumerate(pairs):
            a(f"v_mfma_f32_16x16x32_bf16 {r4(D+4*k)}, {r4(fr(va,p))}, {r4(fr(kb,p))}, {r4(D+4*k)}")
    a(f"s_mul_i32 s{sT}, s{sMW}, 13440\ns_mul_i32 s{sT+1}, s{sNW}, 3360\ns_add_u32 s{sT}, s{sT}, s{sT+1}")
    KH, KD_ = 240, 243
    a(f"v_lshlrev_b32 v{KD_}, 2, v{vC}\nv_mov_b32 v{KH}, 0")
    a(f"v_cmp_gt_u32 vcc, 4, v{vC}")
    a(f"v_add_u32 v{X+8}, 64, v{KD_}\nv_add_u32 v{X+9}, {1680-16}, v{KD_}")
    a(f"v_cndmask_b32 v{KD_+1}, v{X+9}, v{X+8}, vcc")
    a(f"v_cndmask_b32 v{KH+1}, 1, 0, vcc")
    a(f"v_add_u32 v{KD_+2}, {1680+48}, v{KD_}")
    a(f"v_cndmask_b32 v{KH+2}, 2, 1, s[64:65]")
    VH, VR = 246, 249
    a(f"v_mul_u32_u24 v{X+8}, 320, v{vQ}")
    a(f"v_cmp_gt_u32 vcc, 2, v{vQ}")
    a(f"v_subrev_u32 v{VR}, 640, v{X+8}")
    a(f"v_cndmask_b32 v{VH}, 0, 3, vcc")
    a(f"v_cmp_gt_u32 vcc, 3, v{vQ}")
    a(f"v_add_u32 v{X+9}, 640, v{X+8}")
    a(f"v_cndmask_b32 v{VR+1}, 0, v{X+9}, vcc")
    a(f"v_cndmask_b32 v{VH+1}, 1, 0, vcc")
    a(f"v_add_u32 v{VR+2}, 320, v{X+8}\nv_mov_b32 v{VH+2}, 1")
    a(f"v_mov_b32 v{X+12}, {KVC_DUMMY}")
    vi = {5: 0, 2: 1, 3: 2}; ki = {0: 0, 1: 1, 4: 2}
    for k, (va, kb) in enumerate(pairs):
        A_ = X + 13
        a(f"v_cmp_eq_u32 vcc, v{VH+vi[va]}, v{KH+ki[kb]}")
        a(f"v_add3_u32 v{A_}, v{VR+vi[va]}, v{KD_+ki[kb]}, s{sT}")
        a(f"v_cndmask_b32 v{A_}, v{X+12}, v{A_}, vcc")
        if va == 5:
            a(f"v_cmp_eq_u32 vcc, 0, v{vQ}")
            a(f"v_cmp_gt_u32 s[62:63], 2, v{KH+ki[kb]}")
            a("s_and_b64 vcc, vcc, s[62:63]")
            a(f"v_add_u32 v{A_+1}, s{sT}, v{KD_+ki[kb]}")
            a(f"v_add_u32 v{A_+1}, 1600, v{A_+1}")
            a(f"v_cndmask_b32 v{A_+1}, v{A_}, v{A_+1}, vcc")
            a(f"ds_write_b32 v{A_+1}, v{D+4*k}")
        else:
            a(f"ds_write_b32 v{A_}, v{D+4*k}")
        for i in range(1, 4): a(f"ds_write_b32 v{A_}, v{D+4*k+i} offset:{80*i}")
    a(f"s_cmp_lg_u32 s{sW}, 0")
    a("s_cbranch_scc1 P1_KV_POLLED")
    a(f"s_lshl_b32 s{sT+1}, s{sCJ}, 2")
    a(f"v_mov_b32 v{X+1}, 0")
    a.label("P1_KV_POLL")
    a(f"buffer_load_dword v{X}, v{X+1}, {srd(SDBG)}, s{sT+1} offen offset:32 sc0 sc1")
    a("s_waitcnt vmcnt(0)")
    a(f"v_readfirstlane_b32 s{sT+2}, v{X}")
    a(f"s_cmp_eq_u32 s{sT+2}, 0")
    a("s_cbranch_scc1 P1_KV_POLL")
    a.label("P1_KV_POLLED")
    a("s_waitcnt lgkmcnt(0)")
    a("s_barrier")
    a(f"v_lshlrev_b32 v{X}, 2, v0")
    a(f"s_mul_i32 s{sT+1}, s{sCJ}, 13440\ns_add_u32 s{sT+1}, s{sT+1}, {KV_OFF}")
    for i in range(7):
        a(f"ds_read_b32 v{40+i}, v{X} offset:{KVC + 2048*i}")
        a(f"ds_read_b32 v{48+i}, v{X} offset:{KVC + 13440 + 2048*i}")
    a("s_waitcnt lgkmcnt(0)")
    for i in range(7): a(f"v_add_f32 v{40+i}, v{40+i}, v{48+i}")
    for i in range(7):
        if i == 6:
            a(f"v_cmp_gt_u32 vcc, {3360-6*512}, v0")
            a("s_and_saveexec_b64 s[62:63], vcc")
            a("s_cbranch_execz P1_KV_ATM_DONE")
        a(f"buffer_atomic_add_f32 v{40+i}, v{X}, {srd(SWS)}, s{sT+1} offen")
        a(f"s_add_u32 s{sT+1}, s{sT+1}, 2048")
    a.label("P1_KV_ATM_DONE")
    a("s_mov_b64 exec, -1")

def prearrange(a):
    a(f"s_lshl_b32 s{sT}, s{sRB}, 1\ns_add_u32 s{sT}, s{sT}, s{sFJ}\ns_sub_u32 s{sT}, s{sT}, 10")
    a(f"s_and_b32 s60, s{sT}, 7\ns_lshr_b32 s61, s{sT}, 3")
    a(f"s_mov_b32 s{SP1}, s16\ns_mov_b32 s{SP1+1}, s17\ns_mov_b32 s{SP1+2}, {1536*1280}\ns_mov_b32 s{SP1+3}, 0x20000")
    a(f"s_mov_b32 s{SP2}, s8\ns_mov_b32 s{SP2+1}, s9\ns_mov_b32 s{SP2+2}, {640*1280}\ns_mov_b32 s{SP2+3}, 0x20000")
    a(f"s_mul_i32 s62, s60, 160")
    a(f"s_mul_i32 s63, s61, {384*1280}\ns_add_u32 s63, s63, s62")
    a(f"s_mul_i32 s64, s61, {160*1280}\ns_add_u32 s64, s64, s62\ns_sub_u32 s64, s64, {384*1280}")
    a(f"s_mov_b32 s65, 52429")
    for i in range(11):
        if i == 10:
            a(f"s_cmp_ge_u32 s{sW}, 5")
            a("s_cbranch_scc1 P1_PA_LD")
        a(f"v_add_u32 v{T0}, {i*512}, v0")
        a(f"v_mul_u32_u24 v{T0+1}, s65, v{T0}")
        a(f"v_lshrrev_b32 v{T0+1}, 19, v{T0+1}")
        a(f"v_mul_u32_u24 v{T0+2}, 10, v{T0+1}")
        a(f"v_sub_u32 v{T0+2}, v{T0}, v{T0+2}")
        a(f"v_mul_u32_u24 v{T0+1}, 1280, v{T0+1}")
        a(f"v_lshl_add_u32 v{T0+1}, v{T0+2}, 4, v{T0+1}")
        a(f"s_add_u32 m0, s{sW1K}, {i*8192}")
        if i < 7:
            a(f"buffer_load_dwordx4 v{T0+1}, {srd(SP1)}, s63 offen lds")
        elif i > 7:
            a(f"v_add_u32 v{T0+1}, s64, v{T0+1}")
            a(f"buffer_load_dwordx4 v{T0+1}, {srd(SP2)}, 0 offen lds")
        else:
            a(f"s_cmp_ge_u32 s{sW}, 4")
            a("s_cbranch_scc1 P1_PA_7B")
            a(f"buffer_load_dwordx4 v{T0+1}, {srd(SP1)}, s63 offen lds")
            a("s_branch P1_PA_7C")
            a.label("P1_PA_7B")
            a(f"v_add_u32 v{T0+1}, s64, v{T0+1}")
            a(f"buffer_load_dwordx4 v{T0+1}, {srd(SP2)}, 0 offen lds")
            a.label("P1_PA_7C")
    a.label("P1_PA_LD")
    a("s_waitcnt vmcnt(0)")
    a("s_barrier")
    a(f"s_cmp_ge_u32 s{sW}, 5")
    a("s_cbranch_scc1 P1_PA_DONE")
    a(f"v_lshrrev_b32 v{T0}, 2, v{vC}\nv_and_b32 v{T0+1}, 3, v{vC}")
    a(f"s_lshl_b32 s{sT}, s{sW}, 5")
    a(f"v_lshl_add_u32 v{T0+1}, v{T0+1}, 3, s{sT}")
    a(f"v_lshl_add_u32 v{T0+2}, v{vQ}, 2, v{T0}")
    a(f"v_mul_u32_u24 v{T0+2}, 160, v{T0+2}")
    a(f"v_add_u32 v{T0+2}, v{T0+2}, v{T0+1}")
    a(f"v_add_u32 v{T0+3}, {384*160}, v{T0+2}")
    a(f"v_mul_u32_u24 v{T0+4}, 20, v{T0}")
    a(f"v_add_u32 v{T0+4}, v{T0+4}, v{vQ}")
    a(f"v_mul_u32_u24 v{T0+4}, 160, v{T0+4}")
    a(f"v_add_u32 v{T0+4}, v{T0+4}, v{T0+1}")
    a(f"v_add_u32 v{T0+4}, {(384+16)*160}, v{T0+4}")
    a(f"v_lshlrev_b32 v{T0+5}, 4, v{vLANE}")
    R = 112
    for s in range(12):
        for u in range(2):
            a(f"ds_read_b64_tr_b16 {r2(R+4*s+2*u)}, v{T0+2} offset:{(32*s+16*u)*160}")
    for s in range(5):
        for u in range(2):
            g = WO_GROUPS[2 * s + u]
            if g[0] == 'm': a(f"ds_read_b64_tr_b16 {r2(R+48+4*s+2*u)}, v{T0+3} offset:{20*g[1]*160}")
            else: a(f"ds_read_b64_tr_b16 {r2(R+48+4*s+2*u)}, v{T0+4} offset:{80*g[1]*160}")
    a(f"s_mul_i32 s62, s60, 48\ns_mul_i32 s63, s61, 12\ns_add_u32 s62, s62, s63\ns_mul_i32 s62, s62, 5\ns_add_u32 s62, s62, s{sW}\ns_lshl_b32 s62, s62, 10\ns_add_u32 s62, s62, {WD_OFF}")
    a(f"s_lshl_b32 s63, s60, 2\ns_add_u32 s63, s63, s61\ns_mul_i32 s63, s63, 25\ns_add_u32 s63, s63, s{sW}\ns_lshl_b32 s63, s63, 10\ns_add_u32 s63, s63, {WO_OFF}")
    a("s_waitcnt lgkmcnt(0)")
    for s in range(12):
        a(f"buffer_store_dwordx4 {r4(R+4*s)}, v{T0+5}, {srd(SWS)}, s62 offen")
        a("s_add_u32 s62, s62, 5120")
    for s in range(5):
        a(f"buffer_store_dwordx4 {r4(R+48+4*s)}, v{T0+5}, {srd(SWS)}, s63 offen")
        a("s_add_u32 s63, s63, 5120")
    a.label("P1_PA_DONE")
```

```python
from asm import Asm
from common import *

LDS_BYTES = 3 * 4 * 10 * 1024
SWS, SX, SOUT = 24, 28, 32
sRB, sCB, sW = 36, 37, 38
sH = 40
sWD, sWO, sPQ0, sKV = 44, 45, 46, 50
sT = 52
def srd(x): return f"s[{x}:{x+3}]"
vLANE, vC, vQ, vL16 = 1, 2, 3, 4
vKV = [[5, 6], [7, 8]]
vPQ = [9, 10]
T0 = 11
KVF = 20
OA = 36
SG = 68
OF = 84
VPOOL = (164, 256)
DACC, SACC = 0, 80
APOOL = (160, 256)

class Pool:
    def __init__(self, kind, lo, hi):
        self.kind = kind; self.free = list(range(lo, hi - 3, 4))
    def get(self):
        return self.free.pop(0) if self.free else None
    def put(self, r): self.free.append(r)

def gen(a, stamps=False):
    a.raw(".globl p2_kernel\n.p2align 8\n.type p2_kernel,@function\np2_kernel:")
    a("s_cmp_ge_u32 s2, 256")
    a("s_cbranch_scc1 P2_END")
    a("s_load_dwordx2 s[4:5], s[0:1], 0")
    a("s_load_dwordx2 s[6:7], s[0:1], 56")
    a("s_load_dwordx2 s[8:9], s[0:1], 72")
    if stamps: a("s_memrealtime s[72:73]")
    a(f"s_and_b32 s{sT}, s2, 7\ns_lshr_b32 s{sT+1}, s2, 3")
    a(f"s_lshr_b32 s{sRB}, s{sT}, 1\ns_lshl_b32 s{sRB}, s{sRB}, 3\ns_and_b32 s{sT+2}, s{sT+1}, 7\ns_add_u32 s{sRB}, s{sRB}, s{sT+2}")
    a(f"s_and_b32 s{sCB}, s{sT}, 1\ns_lshl_b32 s{sCB}, s{sCB}, 2\ns_lshr_b32 s{sT+2}, s{sT+1}, 3\ns_add_u32 s{sCB}, s{sCB}, s{sT+2}")
    a(f"v_lshrrev_b32 v{T0}, 6, v0")
    a(f"v_and_b32 v{vLANE}, 63, v0")
    a(f"v_readfirstlane_b32 s{sW}, v{T0}")
    a(f"v_and_b32 v{vC}, 15, v0")
    a(f"v_bfe_u32 v{vQ}, v0, 4, 2")
    a(f"v_lshlrev_b32 v{vL16}, 4, v{vLANE}")
    for t in range(4):
        a(f"s_lshl_b32 s{sT}, s{sRB}, 2\ns_add_u32 s{sT}, s{sT}, {t}")
        a(f"s_mul_i32 s{sT+1}, s{sT}, 48\ns_mul_i32 s{sT+2}, s{sW}, 12\ns_add_u32 s{sT+1}, s{sT+1}, s{sT+2}\ns_lshl_b32 s{sH+t}, s{sT+1}, 10")
        a(f"s_mul_i32 s{sT+1}, s{sT}, 20480\ns_mul_i32 s{sT+2}, s{sW}, 5120\ns_add_u32 s{sT+1}, s{sT+1}, s{sT+2}\ns_add_u32 s{sPQ0+t}, s{sT+1}, {PQ_OFF}")
    a(f"s_mul_i32 s{sT}, s{sCB}, 48\ns_mul_i32 s{sT+1}, s{sW}, 12\ns_add_u32 s{sT}, s{sT}, s{sT+1}\ns_mul_i32 s{sT}, s{sT}, 5120\ns_add_u32 s{sWD}, s{sT}, {WD_OFF}")
    a(f"s_lshl_b32 s{sT}, s{sCB}, 2\ns_add_u32 s{sT}, s{sT}, s{sW}\ns_mul_i32 s{sT}, s{sT}, 25600\ns_add_u32 s{sWO}, s{sT}, {WO_OFF}")
    a(f"s_mul_i32 s{sT}, s{sW}, 13440\ns_add_u32 s{sKV}, s{sT}, {KV_OFF}")
    BIG = 0x40000000
    a(f"v_mov_b32 v{T0+3}, {BIG}")
    a(f"v_lshlrev_b32 v{T0}, 5, v{vQ}")
    a(f"v_mul_u32_u24 v{T0+1}, 80, v{vC}")
    a(f"v_add_u32 v{T0+1}, v{T0+1}, v{T0}")
    a(f"v_lshrrev_b32 v{T0+2}, 2, v{vC}")
    a(f"v_add_u32 v{T0+2}, 16, v{T0+2}")
    a(f"v_and_b32 v{T0+4}, 3, v{vC}")
    a(f"v_cmp_eq_u32 vcc, 1, v{T0+4}")
    a(f"v_cndmask_b32 v{T0+2}, v{T0+2}, 20, vcc")
    a(f"v_mul_u32_u24 v{T0+2}, 80, v{T0+2}")
    a(f"v_add_u32 v{T0+2}, v{T0+2}, v{T0}")
    a(f"v_cmp_gt_u32 vcc, 2, v{T0+4}")
    a(f"v_cndmask_b32 v{T0+2}, v{T0+3}, v{T0+2}, vcc")
    a(f"v_cmp_gt_u32 vcc, 3, v{vQ}")
    a(f"v_cndmask_b32 v{vKV[0][0]}, v{T0+3}, v{T0+1}, vcc")
    a(f"v_cndmask_b32 v{vKV[1][0]}, v{T0+3}, v{T0+2}, vcc")
    a(f"v_lshlrev_b32 v{T0+4}, 8, v{vQ}")
    a(f"v_lshl_add_u32 v{T0+4}, v{vC}, 3, v{T0+4}")
    a(f"v_cndmask_b32 v{vPQ[0]}, v{T0+3}, v{T0+4}, vcc")
    a(f"v_cmp_gt_u32 vcc, 2, v{vQ}")
    a(f"v_add_u32 v{T0+1}, 16, v{T0+1}\nv_add_u32 v{T0+2}, 16, v{T0+2}\nv_add_u32 v{T0+4}, 128, v{T0+4}")
    a(f"v_cndmask_b32 v{vKV[0][1]}, v{T0+3}, v{T0+1}, vcc")
    a(f"v_cndmask_b32 v{vKV[1][1]}, v{T0+3}, v{T0+2}, vcc")
    a(f"v_cndmask_b32 v{vPQ[1]}, v{T0+3}, v{T0+4}, vcc")
    a("s_waitcnt lgkmcnt(0)")
    def mk(s, lo, n):
        a(f"s_mov_b32 s{s}, s{lo}\ns_mov_b32 s{s+1}, s{lo+1}\ns_mov_b32 s{s+2}, {n}\ns_mov_b32 s{s+3}, 0x20000")
    mk(SWS, 8, 32 << 20); mk(SX, 4, 2048 * 1280); mk(SOUT, 6, 2048 * 1280)

    vm = VM()
    vp = Pool('v', *VPOOL); ap = Pool('a', *APOOL)
    items = []
    for hh in range(8): items.append(('O', hh))
    for s in range(5): items.append(('S', s))
    for s in range(12): items.append(('D', s))
    def units(it):
        k, i = it
        U = []
        if k == 'O':
            for tile in range(2):
                for u in range(2):
                    U.append(('v', [(0, 4, vKV[tile][u], sKV, i * 1680)]))
            for t in range(4):
                U.append(('any', [(0, 2, vPQ[0], sPQ0 + t, i * 640), (2, 2, vPQ[1], sPQ0 + t, i * 640)]))
        elif k == 'S':
            for ct in range(5): U.append(('any', [(0, 4, vL16, sWO, (i * 5 + ct) * 1024)]))
        else:
            for t in range(4): U.append(('any', [(0, 4, vL16, sH + t, i * 1024)]))
            for ct in range(5): U.append(('any', [(0, 4, vL16, sWD, (i * 5 + ct) * 1024)]))
        return U
    queue = [(n, j, u) for n, it in enumerate(items) for j, u in enumerate(units(it))]
    alloc = {}
    qi = [0]
    def pump(maxn=1000):
        n = 0
        while qi[0] < len(queue) and n < maxn:
            it, j, (cls, lds) = queue[qi[0]]
            pool = vp
            if cls == 'any':
                pool = ap if ap.free else vp
                if pool is vp and it < 8 and len(vp.free) <= 4: break
            r = pool.get()
            if r is None: break
            alloc[(it, j)] = (pool, r)
            for (so, nr, voff, sb, imm) in lds:
                reg = f"{pool.kind}[{r+so}:{r+so+nr-1}]"
                op = "buffer_load_dwordx4" if nr == 4 else "buffer_load_dwordx2"
                if imm < 4096:
                    a(f"{op} {reg}, v{voff}, {srd(SWS)}, s{sb} offen offset:{imm}")
                else:
                    a(f"s_add_u32 s{sT}, s{sb}, {imm & ~4095}")
                    a(f"{op} {reg}, v{voff}, {srd(SWS)}, s{sT} offen offset:{imm & 4095}")
                vm.issue(it)
            qi[0] += 1; n += 1
    def R(it, j):
        p, r = alloc[(it, j)]; return f"{p.kind}[{r}:{r+3}]"
    def release(it):
        for key in [k for k in alloc if k[0] == it]:
            p, r = alloc.pop(key); p.put(r)
    pump()
    for i in range(160): a(f"v_accvgpr_write_b32 a{i}, 0")
    a(f"s_mov_b32 s60, {f32(1e-6)}")
    for n, it in enumerate(items):
        k, i = it
        assert all((n, j) in alloc for j in range(len(units(it)))), (n, it)
        c = vm.count_after({n})
        a(f"s_waitcnt vmcnt({min(c, 63)})")
        if k == 'O':
            kf = KVF + 8 * (i & 1)
            for tile in range(2):
                for u in range(2):
                    r = alloc[(n, tile * 2 + u)][1]
                    a(f"v_cvt_pk_bf16_f32 v{kf+4*tile+2*u}, v{r}, v{r+1}")
                    a(f"v_cvt_pk_bf16_f32 v{kf+4*tile+2*u+1}, v{r+2}, v{r+3}")
            for t in range(4):
                for tile in range(2):
                    d = OA + 8 * t + 4 * tile
                    a(f"v_mfma_f32_16x16x32_bf16 v[{d}:{d+3}], v[{kf+4*tile}:{kf+4*tile+3}], {R(n, 4+t)}, 0")
            release(n); pump()
            gi = WO_GROUPS.index(('m', i))
            for t in range(4): a(f"v_add_f32 v{T0+t}, s60, v{OA+8*t+5}")
            for t in range(4): a(f"v_rcp_f32 v{T0+t}, v{T0+t}")
            for t in range(4):
                for e in range(4): a(f"v_mul_f32 v{OA+8*t+e}, v{OA+8*t+e}, v{T0+t}")
                a(f"v_mul_f32 v{SG+4*t+(i&3)}, v{OA+8*t+4}, v{T0+t}")
                o = OF + 20 * t + 2 * gi
                a(f"v_cvt_pk_bf16_f32 v{o}, v{OA+8*t}, v{OA+8*t+1}")
                a(f"v_cvt_pk_bf16_f32 v{o+1}, v{OA+8*t+2}, v{OA+8*t+3}")
            if (i & 3) == 3:
                gs = WO_GROUPS.index(('s', i >> 2))
                for t in range(4):
                    o = OF + 20 * t + 2 * gs
                    a(f"v_cvt_pk_bf16_f32 v{o}, v{SG+4*t}, v{SG+4*t+1}")
                    a(f"v_cvt_pk_bf16_f32 v{o+1}, v{SG+4*t+2}, v{SG+4*t+3}")
        elif k == 'S':
            for ct in range(5):
                for t in range(4):
                    d = SACC + (t * 5 + ct) * 4; o = OF + 20 * t + 4 * i
                    a(f"v_mfma_f32_16x16x32_bf16 a[{d}:{d+3}], {R(n, ct)}, v[{o}:{o+3}], a[{d}:{d+3}]")
            release(n)
            if i == 4:
                for r in range(KVF, OF + 80, 4): vp.put(r)
            pump()
        else:
            for ct in range(5):
                for t in range(4):
                    d = DACC + (t * 5 + ct) * 4
                    a(f"v_mfma_f32_16x16x32_bf16 a[{d}:{d+3}], {R(n, 4+ct)}, {R(n, t)}, a[{d}:{d+3}]")
            release(n); pump()
    if stamps: a("s_memrealtime s[74:75]")
    XR = 20
    a(f"s_lshl_b32 s{sT}, s{sRB}, 6\ns_lshl_b32 s{sT+1}, s{sW}, 4\ns_add_u32 s{sT}, s{sT}, s{sT+1}\ns_mul_i32 s{sT}, s{sT}, 1280\ns_mul_i32 s{sT+1}, s{sCB}, 160\ns_add_u32 s61, s{sT}, s{sT+1}")
    a(f"v_mul_u32_u24 v{T0}, 1280, v{vC}")
    a(f"v_lshl_add_u32 v{T0}, v{vQ}, 3, v{T0}")
    for ct in range(5): a(f"buffer_load_dwordx2 v[{XR+2*ct}:{XR+2*ct+1}], v{T0}, {srd(SX)}, s61 offen offset:{32*ct}")
    for t in range(4):
        lab = f"P2_RW{t}"
        a(f"s_cmp_eq_u32 s{sW}, {t}")
        a(f"s_cbranch_scc1 {lab}")
        a(f"s_sub_u32 s{sT}, s{sW}, {t+1}\ns_and_b32 s{sT}, s{sT}, 3\ns_mul_i32 s{sT}, s{sT}, 10240\ns_add_u32 s{sT}, s{sT}, {t*30720}")
        a(f"v_add_u32 v{T0+1}, s{sT}, v{vL16}")
        for m in range(2):
            for ct in range(5):
                d = (DACC if m == 0 else SACC) + (t * 5 + ct) * 4
                a(f"ds_write_b128 v{T0+1}, a[{d}:{d+3}] offset:{(m*5+ct)*1024}")
        a.label(lab)
    OWN = 32
    for t in range(4):
        lab = f"P2_OWN{t}"
        a(f"s_cmp_lg_u32 s{sW}, {t}")
        a(f"s_cbranch_scc1 {lab}")
        for m in range(2):
            for j in range(20):
                a(f"v_accvgpr_read_b32 v{OWN+m*20+j}, a{(DACC if m == 0 else SACC) + t*20 + j}")
        a.label(lab)
    a(f"s_mul_i32 s{sT}, s{sW}, 30720")
    a(f"v_add_u32 v{T0+1}, s{sT}, v{vL16}")
    a("s_waitcnt lgkmcnt(0)")
    a("s_barrier")
    RD = 72
    for sl in range(3):
        for j in range(10):
            a(f"ds_read_b128 v[{RD+sl*40+4*j}:{RD+sl*40+4*j+3}], v{T0+1} offset:{sl*10240+j*1024}")
    a(f"s_mov_b32 s62, {f32(-LOG2E)}")
    a("s_waitcnt lgkmcnt(0)")
    for j in range(40):
        a(f"v_add_f32 v{RD+j}, v{RD+j}, v{RD+40+j}")
        a(f"v_add_f32 v{OWN+j}, v{OWN+j}, v{RD+80+j}")
    for j in range(40): a(f"v_add_f32 v{OWN+j}, v{OWN+j}, v{RD+j}")
    for j in range(20): a(f"v_mul_f32 v{RD+j}, s62, v{OWN+j}")
    for j in range(20): a(f"v_exp_f32 v{RD+j}, v{RD+j}")
    for j in range(20): a(f"v_add_f32 v{RD+j}, 1.0, v{RD+j}")
    for j in range(20): a(f"v_rcp_f32 v{RD+j}, v{RD+j}")
    for j in range(20): a(f"v_mul_f32 v{OWN+j}, v{OWN+j}, v{RD+j}")
    a("s_waitcnt vmcnt(0)")
    for j in range(10):
        a(f"v_lshlrev_b32 v{RD+2*j}, 16, v{XR+j}")
        a(f"v_and_b32 v{RD+2*j+1}, 0xffff0000, v{XR+j}")
    for j in range(20): a(f"v_fma_f32 v{RD+j}, v{OWN+j}, v{OWN+20+j}, v{RD+j}")
    for j in range(10): a(f"v_cvt_pk_bf16_f32 v{XR+j}, v{RD+2*j}, v{RD+2*j+1}")
    for ct in range(5): a(f"buffer_store_dwordx2 v[{XR+2*ct}:{XR+2*ct+1}], v{T0}, {srd(SOUT)}, s61 offen offset:{32*ct}")
    if stamps:
        a("s_waitcnt vmcnt(0)")
        a("s_memrealtime s[76:77]")
        a("s_waitcnt lgkmcnt(0)")
        a(f"s_lshl_b32 s{sT}, s2, 2\ns_add_u32 s{sT}, s{sT}, s{sW}\ns_lshl_b32 s{sT}, s{sT}, 4\ns_add_u32 s{sT}, s{sT}, {STAMP_OFF + 65536}")
        a("v_mov_b32 v32, s72\nv_mov_b32 v33, s74\nv_mov_b32 v34, s76\nv_mov_b32 v35, s76\nv_mov_b32 v36, 0")
        a(f"buffer_store_dwordx4 v[32:35], v36, {srd(SWS)}, s{sT} offen")
    a.label("P2_END")
    a("s_endpgm")
```

```python
import sys
sys.path.insert(0, 'gen')
from asm import Asm
from common import *
import p1, p2
stamps = '--stamps' in sys.argv
a = Asm()
a.raw(f"; @launch kernel=p1_kernel grid=(256,1,1) block=(512,1,1) lds={p1.LDS_BYTES}")
a.raw(f"; @launch kernel=p2_kernel grid=(256,1,1) block=(256,1,1) lds={p2.LDS_BYTES}")
a.raw('.amdgcn_target "amdgcn-amd-amdhsa--gfx950"\n.text')
p1.gen(a, stamps)
a.hist = []
p2.gen(a, stamps)
a.raw('.section .rodata,"a"\n.p2align 6')
a.raw(KD.format(name="p1_kernel", nv=256, ns=96, acc=256))
a.raw('.p2align 6')
a.raw(KD.format(name="p2_kernel", nv=512, ns=96, acc=256))
out = [x for x in sys.argv[1:] if not x.startswith('--')][0]
open(out, 'w').write(a.text())
print("lines", len(a.lines), "nops", a.nnops)
```
